```python
import torch

def _softmax(x, axis=-1):
    return torch.softmax(x, dim=axis)
def _gelu(x):
    return torch.nn.functional.gelu(x, approximate="tanh")
def _silu(x):
    return torch.nn.functional.silu(x)
def _sigmoid(x):
    return torch.sigmoid(x)
def _layernorm(x, axis=-1, eps=1e-5):
    m = x.mean(dim=axis, keepdim=True)
    v = x.var(dim=axis, keepdim=True, unbiased=False)
    return (x - m) / torch.sqrt(v + eps)
def _scatter_add(tgt, idx, src, axis=0):
    return tgt.clone().index_add_(axis, idx, src)
def _segment_sum(src, seg, n):
    out = torch.zeros((n,) + src.shape[1:], dtype=src.dtype)
    return out.index_add_(0, seg, src)
def _pad(x, pw):
    flat = tuple(v for pair in reversed(pw) for v in pair)
    return torch.nn.functional.pad(x, flat)

kernel_name = 'standalone__deep_cross_pnn__recsys'

def setup_inputs():

    _w = (lambda a: (lambda t: t.to(torch.bfloat16) if t.is_floating_point() else t)(torch.as_tensor(a)))
    B, F, D, V = 1024, 100, 128, min(1000, 100000)
    H = 4 * D
    return {
        "idx": _w((lambda lo, hi, *s: torch.randint(lo, hi, s))(0, V, B, F).to(torch.int64)),
        "table": _w((lambda *s: torch.randn(*s, dtype=torch.bfloat16) * 3.2)(V, D) * (D ** -0.5)),
        "w_p": _w((lambda *s: torch.randn(*s, dtype=torch.bfloat16) * 0.1)(F * F) * ((F * F) ** -0.5)),
        "w1": _w((lambda *s: torch.randn(*s, dtype=torch.bfloat16) * 3.2)(F * D, H) * ((F * D) ** -0.5)),
        "b1": _w((lambda *s: torch.randn(*s, dtype=torch.bfloat16) * 3.2)(H) * 0.01),
        "w2": _w((lambda *s: torch.randn(*s, dtype=torch.bfloat16) * 0.1)(H) * (H ** -0.5)),
        "b2": _w((lambda *s: torch.randn(*s, dtype=torch.bfloat16) * 0.1)(1) * 0.01),
    }

def reference(idx, table, w_p, w1, b1, w2, b2):
    emb = table[idx]
    B = emb.shape[0]; F = emb.shape[1]; D = emb.shape[2]
    ip = torch.einsum('bid,bjd->bij', emb, emb)
    ip = ip.reshape(B, F * F)
    logit_p = ip @ w_p
    z = emb.reshape(B, F * D)
    h = _gelu(z @ w1 + b1)
    logit_d = h @ w2 + b2
    return logit_p + logit_d
```

```python
import re

REG_RE = re.compile(r'^(-?)(?:abs\()?([vas])(?:(\d+)|\[(\d+):(\d+)\])\)?$')

def regs_of(tok):
    tok = tok.strip()
    if tok in ('vcc',): return {'vcc_lo', 'vcc_hi'}
    if tok in ('vcc_lo', 'vcc_hi', 'm0', 'exec_lo', 'exec_hi', 'scc'): return {tok}
    if tok == 'exec': return {'exec_lo', 'exec_hi'}
    m = REG_RE.match(tok)
    if not m: return set()
    f = m.group(2)
    if m.group(3) is not None:
        return {f + m.group(3)}
    return {f + str(i) for i in range(int(m.group(4)), int(m.group(5)) + 1)}

TRANS = ('v_exp_f32', 'v_log_f32', 'v_rcp_f32', 'v_rsq_f32', 'v_sqrt_f32', 'v_sin_f32', 'v_cos_f32')

class Ins:
    def __init__(self, text):
        self.text = text
        t = text.split(';')[0].strip()
        parts = t.split(None, 1)
        self.op = parts[0]
        rest = parts[1] if len(parts) > 1 else ''
        ops = [o.strip() for o in rest.split(',')] if rest else []
        mods = []
        if ops:
            last = ops[-1].split()
            ops[-1] = last[0] if last else ''
            mods = last[1:]
        self.ops, self.mods = ops, mods
        op = self.op
        self.rd, self.wr = set(), set()
        self.kind = 'other'
        self.srcAB, self.srcC = set(), set()
        self.store_data = set()
        R = [regs_of(o) for o in ops]
        def U(lst):
            s = set()
            for x in lst: s |= x
            return s
        if op.startswith('v_mfma'):
            self.kind = 'mfma'
            self.wr = R[0]; self.srcAB = R[1] | R[2]; self.srcC = R[3]
            self.rd = self.srcAB | self.srcC
            self.passes = 8 if '32x32x16' in op else 4
            self.dtok, self.ctok = ops[0], ops[3]
        elif op.startswith('buffer_load') or op.startswith('global_load'):
            self.kind = 'vmem'
            if 'lds' in mods or 'lds' in op:
                self.rd = U(R) | {'m0'}; self.is_dma = True
            else:
                self.wr = R[0]; self.rd = U(R[1:])
                if 'd16' in op: self.rd |= R[0]
        elif op.startswith('buffer_store') or op.startswith('global_store'):
            self.kind = 'vmem'; self.rd = U(R)
            d = R[0] if op.startswith('buffer') else R[1]
            if 'x3' in op or 'x4' in op: self.store_data = d
        elif op.startswith('buffer_atomic'):
            self.kind = 'vmem'; self.rd = U(R)
            if 'sc0' in mods: self.wr = R[0]
        elif op in ('buffer_wbl2', 'buffer_inv'):
            self.kind = 'vmem'
        elif op.startswith('ds_read') or op.startswith('ds_bpermute') or op.startswith('ds_swizzle'):
            self.kind = 'lds'; self.wr = R[0]; self.rd = U(R[1:])
        elif op.startswith('ds_write') or op.startswith('ds_add'):
            self.kind = 'lds'; self.rd = U(R)
            if 'addtid' in op: self.rd |= {'m0'}
        elif op.startswith('s_load') or op.startswith('s_memtime') or op.startswith('s_memrealtime') or op.startswith('s_buffer_load'):
            self.kind = 'smem'; self.wr = R[0]; self.rd = U(R[1:])
        elif op.startswith('v_'):
            self.kind = 'valu'
            if op.startswith('v_cmp'):
                self.wr = R[0]; self.rd = U(R[1:])
            elif op.startswith('v_permlane') and 'swap' in op:
                self.wr = R[0] | R[1]; self.rd = R[0] | R[1]
            elif op.startswith('v_add_co') or op.startswith('v_addc_co') or op.startswith('v_sub_co'):
                self.wr = R[0] | R[1]; self.rd = U(R[2:])
            else:
                self.wr = R[0]; self.rd = U(R[1:])
                if op.startswith('v_fmac') or op.startswith('v_dot2c') or 'dpp' in op or op.startswith('v_writelane'):
                    self.rd |= R[0]
                if op.startswith('v_cndmask') and len(ops) == 3: self.rd |= {'vcc_lo', 'vcc_hi'}
        elif op.startswith('s_'):
            self.kind = 'salu'
            if op.startswith('s_cmp') or op.startswith('s_bitcmp'):
                self.rd = U(R); self.wr = {'scc'}
            elif op in ('s_waitcnt', 's_nop', 's_barrier', 's_endpgm', 's_sleep', 's_setprio') or op.startswith('s_cbranch') or op == 's_branch':
                self.kind = 'ctl'
            else:
                self.wr = R[0]; self.rd = U(R[1:])
                if 'saveexec' in op:
                    self.wr |= {'exec_lo', 'exec_hi'}
                if op.startswith('s_addk') or op.startswith('s_mulk'): self.rd |= R[0]
        self.is_dma = getattr(self, 'is_dma', False)

    def states(self):
        if self.op == 's_nop': return int(self.ops[0], 0) + 1
        return 1

def is_v(r): return r[0] in 'va' and r[1:].isdigit()
def is_s(r): return (r[0] == 's' and r[1:].isdigit()) or r.startswith('vcc')

class Prog:
    def __init__(self):
        self.out = []
        self.vm = []
        self.lg = []
        self.nwait = 0
        self.nnop = 0

    def raw(self, s):
        self.out.append(s)

    def comment(self, s):
        self.out.append('    ; ' + s)

    def label(self, name):
        self.out.append(name + ':')

    def _emit_wait(self, vm=None, lg=None):
        parts = []
        if vm is not None:
            vm = min(vm, 63)
            if len(self.vm) > vm:
                parts.append('vmcnt(%d)' % vm)
                self.vm = self.vm[len(self.vm) - vm:] if vm else []
        if lg is not None:
            lg = min(lg, 15)
            if len(self.lg) > lg:
                parts.append('lgkmcnt(%d)' % lg)
                self.lg = self.lg[len(self.lg) - lg:] if lg else []
        if parts:
            self.out.append(Ins('s_waitcnt ' + ' '.join(parts)))
            self.nwait += 1

    def wait(self, vm=None, lg=None):
        self._emit_wait(vm, lg)

    def wait_for(self, ins_list):
        vm = lg = None
        for x in ins_list:
            if x in self.vm:
                n = len(self.vm) - 1 - self.vm.index(x)
                vm = n if vm is None else min(vm, n)
            if x in self.lg:
                n = len(self.lg) - 1 - self.lg.index(x)
                if any(o.kind == 'smem' for o in self.lg): n = 0
                lg = n if lg is None else min(lg, n)
        self._emit_wait(vm, lg)

    def _need_states(self, ins):
        need = 0
        dist = 0
        for prev in reversed(self.out):
            if isinstance(prev, str):
                if prev.endswith(':') and not prev.strip().startswith(';'): break
                continue
            req = 0
            pw = prev.wr
            if prev.kind == 'valu':
                pv = {r for r in pw if is_v(r)}
                ps = {r for r in pw if is_s(r)}
                if ins.kind == 'mfma' and pv & ins.rd: req = max(req, 2)
                if ins.kind == 'valu':
                    if (ins.op.startswith('v_permlane') or 'dpp' in ins.op) and pv & ins.rd: req = max(req, 2)
                    if (ins.op.startswith('v_readfirstlane') or ins.op.startswith('v_readlane')) and pv & ins.rd: req = max(req, 1)
                    if ps & ins.rd: req = max(req, 4 if ins.op.startswith(('v_readlane', 'v_writelane')) else 2)
                    if prev.op.startswith(TRANS) and pv & ins.rd: req = max(req, 1)
                    if 'sdwa' in prev.op and pv & (ins.rd | ins.wr): req = max(req, 1)
                if prev.op.startswith('v_dot') and pv & (ins.rd | ins.wr):
                    same = ins.op == prev.op
                    if not (same and not (pv & (regs_of(ins.ops[1]) | regs_of(ins.ops[2])))):
                        req = max(req, 3)
                if ins.kind == 'vmem' and ps & ins.rd: req = max(req, 5)
                if ins.kind in ('salu', 'smem') and ps & ins.rd: req = max(req, 1)
                if {'exec_lo', 'exec_hi'} & pw: req = max(req, 5)
            elif prev.kind == 'mfma':
                big = {4: 8, 8: 12}[prev.passes]
                if ins.kind == 'mfma':
                    if pw & ins.srcAB: req = max(req, big)
                    if pw & ins.srcC:
                        if not (ins.ctok == prev.dtok and ins.passes == prev.passes):
                            req = max(req, {4: 6, 8: 10}[prev.passes])
                    elif pw & ins.wr:
                        req = max(req, big)
                elif ins.kind in ('valu', 'vmem', 'lds'):
                    if pw & (ins.rd | ins.wr): req = max(req, big)
                    if ins.kind == 'valu' and prev.srcC & ins.wr: req = max(req, {4: 3, 8: 7}[prev.passes])
            elif prev.kind == 'salu':
                if 'm0' in pw and ins.kind in ('vmem', 'lds') and 'm0' in ins.rd: req = max(req, 1)
            elif prev.kind == 'vmem':
                if prev.store_data & ins.wr: req = max(req, 2)
            if req > dist: need = max(need, req - dist)
            dist += prev.states()
            if dist >= 20: break
        return need

    def I(self, text):
        ins = Ins(text)
        touch = ins.rd | ins.wr
        vm = lg = None
        for k, o in enumerate(self.vm):
            if o.wr & touch:
                vm = len(self.vm) - 1 - k
        for k, o in enumerate(self.lg):
            if o.wr & touch:
                lg = len(self.lg) - 1 - k
        if lg is not None and any(o.kind == 'smem' for o in self.lg): lg = 0
        if ins.kind == 'vmem' and len(self.vm) >= 63:
            vm = 62 if vm is None else min(vm, 62)
        if ins.kind in ('lds', 'smem') and len(self.lg) >= 15:
            lg = 14 if lg is None else min(lg, 14)
            if any(o.kind == 'smem' for o in self.lg): lg = 0
        self._emit_wait(vm, lg)
        n = self._need_states(ins)
        while n > 0:
            k = min(n, 16)
            self.out.append(Ins('s_nop %d' % (k - 1)))
            self.nnop += 1
            n -= k
        self.out.append(ins)
        if ins.kind == 'vmem': self.vm.append(ins)
        elif ins.kind == 'lds': self.lg.append(ins)
        elif ins.kind == 'smem':
            self.lg.append(ins); self.lg.append(Ins('s_memtime s[100:101]') if False else ins)
        return ins

    def barrier(self):
        self.I('s_barrier')

    def text(self):
        lines = []
        for o in self.out:
            if isinstance(o, str): lines.append(o)
            else: lines.append('    ' + o.text)
        return '\n'.join(lines) + '\n'

    def count(self):
        return sum(1 for o in self.out if not isinstance(o, str))

def kernel_desc(name, vgpr, accum, sgpr=102):
    return f""".section .rodata,"a"
.p2align 6
.amdhsa_kernel {name}
  .amdhsa_next_free_vgpr {vgpr}
  .amdhsa_next_free_sgpr {sgpr}
  .amdhsa_accum_offset {accum}
  .amdhsa_group_segment_fixed_size 0
  .amdhsa_kernarg_size 80
  .amdhsa_user_sgpr_count 2
  .amdhsa_user_sgpr_kernarg_segment_ptr 1
  .amdhsa_system_sgpr_workgroup_id_x 1
.end_amdhsa_kernel
"""
```

```python
import sys, argparse
from asmlib import Prog, kernel_desc

HEADER = """; Kernarg layout for this problem (80 bytes, ptrs only, base s[0:1]):
"""

TAB_LDS = 0
IDX_LDS = 81920
LDS1 = 81920 + 53248
X_BYTES = 8 * 1024 * 1024
STAMP_OFF = 64 * 1024 * 1024

def srd(p, d, lo, nbytes):
    p.I(f's_mov_b32 s{d}, s{lo}')
    p.I(f's_and_b32 s{d+1}, s{lo+1}, 0xffff')
    p.I(f's_mov_b32 s{d+2}, {nbytes}')
    p.I(f's_mov_b32 s{d+3}, 0x20000')

class Stamps:
    def __init__(self, p, on, base=60):
        self.p, self.on, self.base, self.n = p, on, base, 0
    def stamp(self):
        if not self.on: return
        r = self.base + 2 * self.n
        self.p.I(f's_memtime s[{r}:{r+1}]')
        self.p.wait(lg=0)
        self.n += 1
    def dump(self, ws_lo, vtmp, vadr, s_wave_global, kidx):
        if not self.on: return
        p = self.p
        p.I(f's_add_u32 s96, s{ws_lo}, {STAMP_OFF + kidx * 1024 * 64}')
        p.I(f's_addc_u32 s97, s{ws_lo+1}, 0')
        p.I('s_and_b32 s97, s97, 0xffff')
        p.I(f's_mov_b32 s98, {1024 * 64}')
        p.I('s_mov_b32 s99, 0x20000')
        p.I(f's_lshl_b32 s95, s{s_wave_global}, 6')
        p.I(f'v_mov_b32 v{vadr}, s95')
        p.I('s_mov_b64 exec, 1')
        for i in range(self.n):
            p.I(f'v_mov_b32 v{vtmp}, s{self.base + 2 * i}')
            p.I(f'buffer_store_dword v{vtmp}, v{vadr}, s[96:99], 0 offen offset:{4 * i}')
        p.I('s_getreg_b32 s95, hwreg(HW_REG_XCC_ID)')
        p.I(f'v_mov_b32 v{vtmp}, s95')
        p.I(f'buffer_store_dword v{vtmp}, v{vadr}, s[96:99], 0 offen offset:60')
        p.I('s_mov_b64 exec, -1')


def gen_gemm(o):
    p = Prog()
    st = Stamps(p, o.stamps)
    D = o.depth
    L = o.look
    name = 'gemm_kernel'
    p.raw('.text'); p.raw(f'.globl {name}'); p.raw('.p2align 8'); p.raw(f'.type {name},@function')
    p.label(name)
    p.I('s_cmp_ge_u32 s2, 256')
    p.I('s_cbranch_scc1 L_gemm_done')
    st.stamp()
    p.I('s_load_dwordx4 s[4:7], s[0:1], 0')
    p.I('s_load_dwordx2 s[8:9], s[0:1], 24')
    p.I('s_load_dwordx2 s[10:11], s[0:1], 72')
    if o.map == 0:
        p.I('s_and_b32 s30, s2, 7')
        p.I('s_bfe_u32 s31, s2, 0x20003')
        p.I('s_lshr_b32 s32, s2, 5')
    else:
        p.I('s_and_b32 s31, s2, 3')
        p.I('s_bfe_u32 s30, s2, 0x20003')
        p.I('s_and_b32 s34, s2, 4')
        p.I('s_or_b32 s30, s30, s34')
        p.I('s_lshr_b32 s32, s2, 5')
    p.I('v_lshrrev_b32 v15, 6, v0')
    p.I('v_and_b32 v1, 63, v0')
    p.I('v_readfirstlane_b32 s33, v15')
    p.I('s_lshl_b32 s34, s31, 6')
    p.I('s_movk_i32 s35, 205')
    for t in range(5):
        p.I(f'v_add_u32 v15, {64 * t}, v1')
        p.I('v_mul_u32_u24 v14, s35, v15')
        p.I('v_lshrrev_b32 v14, 10, v14')
        p.I('v_mul_u32_u24 v13, 5, v14')
        p.I('v_sub_u32 v13, v15, v13')
        p.I('v_min_u32 v13, 3, v13')
        p.I('v_lshlrev_b32 v14, 8, v14')
        p.I('v_lshl_add_u32 v14, v13, 4, v14')
        p.I(f'v_add_u32 v{2 + t}, s34, v14')
    p.I('v_lshlrev_b32 v7, 4, v1')
    p.I('v_and_b32 v15, 15, v1')
    p.I('v_lshlrev_b32 v8, 3, v15')
    p.I('v_bfe_u32 v15, v1, 4, 1')
    p.I('v_lshl_add_u32 v8, v15, 14, v8')
    p.I('v_lshrrev_b32 v14, 5, v1')
    p.I('v_lshl_add_u32 v8, v14, 13, v8')
    p.I('v_add_u32 v9, 0x1000, v8')
    p.I('v_lshlrev_b32 v14, 4, v14')
    p.I('v_and_b32 v15, 31, v1')
    p.I('s_movk_i32 s35, 400')
    p.I('v_mul_u32_u24 v15, s35, v15')
    for s in range(4):
        p.I(f's_xor_b32 s36, s33, {s}')
        p.I('s_mul_i32 s36, s36, 12800')
        p.I('s_lshl_b32 s37, s33, 4')
        p.I('s_add_u32 s36, s36, s37')
        p.I(f's_add_u32 s36, s36, {IDX_LDS}')
        p.I(f'v_add_u32 v{10 + s}, s36, v15')
    p.I('s_mov_b32 s40, 0x05040100')
    p.I('s_mov_b32 s41, 0x07060302')
    p.I('s_movk_i32 s42, 80')
    p.I('s_lshl_b32 s43, s31, 15')
    p.I('s_lshl_b32 s36, s30, 7')
    p.I('s_add_u32 s43, s43, s36')
    p.I('s_lshl_b32 s36, s33, 17')
    p.I('s_add_u32 s44, s43, s36')
    p.I(f's_add_u32 s44, s44, {96 * 131072}')
    p.I('s_lshl_b32 s36, s33, 19')
    p.I('s_add_u32 s43, s43, s36')
    srd(p, 12, 4, 409600)
    srd(p, 16, 6, 256000)
    srd(p, 20, 8, 13107200)
    srd(p, 24, 10, X_BYTES)
    st.stamp()
    p.I('s_mul_i32 s36, s33, 20480')
    p.I('s_mov_b32 m0, s36')
    p.I('s_lshl_b32 s37, s33, 16')
    dma = []
    for j in range(4):
        for t in range(5):
            dma.append(p.I(f'buffer_load_dwordx4 v{2 + t}, s[16:19], s37 offen lds'))
            p.I('s_add_u32 m0, m0, 1024')
        p.I('s_add_u32 s37, s37, 16384')
    p.I('s_mul_i32 s36, s33, 13312')
    p.I('s_mul_i32 s37, s32, 51200')
    p.I('s_add_u32 s37, s37, s36')
    p.I(f's_add_u32 m0, s36, {IDX_LDS}')
    for t in range(13):
        if t and t % 4 == 0:
            p.I('s_add_u32 m0, m0, 4096')
            p.I('s_add_u32 s37, s37, 4096')
        dma.append(p.I(f'buffer_load_dwordx4 v7, s[12:15], s37 offen offset:{(t % 4) * 1024} lds'))

    NS = 25
    RAW = 80
    BT = 48
    IDXR = 16
    ER = 128
    def raw(s, i): return RAW + (s % D) * 16 + 2 * i
    def soff_instr(s):
        r = 46 + (s % 2)
        if s == 24: return r, f's_mov_b32 s{r}, s44'
        return r, f's_add_u32 s{r}, s43, {(16 * (s // 4) + s % 4) * 131072}'
    def bload(s, i, sr):
        return f'buffer_load_dwordx2 v[{raw(s, i)}:{raw(s, i) + 1}], v{8 + i // 4}, s[20:23], s{sr} offen offset:{(i % 4) * 1024}'
    def issue_b(s):
        r, t = soff_instr(s)
        p.I(t)
        for i in range(8): p.I(bload(s, i, r))
    def idx_reg(s, slot): return IDXR + ((s // 4) % 2) * 16 + slot * 4 + (s % 4)
    def idx_read(c, slot):
        b = IDXR + (c % 2) * 16 + slot * 4
        if c == 6:
            return f'ds_read_b32 v{b}, v{10 + slot} offset:384'
        return f'ds_read_b128 v[{b}:{b + 3}], v{10 + slot} offset:{64 * c}'
    def bt(s, kap, jj): return BT + (s % 2) * 16 + (kap * 2 + jj) * 4
    def trans_group(s, mm):
        l = []
        for i in (2 * mm, 2 * mm + 1):
            l.append(f'v_permlane16_swap_b32 v{raw(s, i)}, v{raw(s, i) + 1}')
        for kap in range(2):
            for jj in range(2):
                l.append(f'v_perm_b32 v{bt(s, kap, jj) + mm}, v{raw(s, 2 * mm + 1) + kap}, v{raw(s, 2 * mm) + kap}, s{40 + jj}')
        return l
    def e_reg(phi): return ER + (phi % 16) * 4
    def e_instrs(phi):
        s, k = divmod(phi, 8)
        kap, slot = divmod(k, 4)
        l = []
        r = idx_reg(s, slot)
        if kap == 0:
            l.append(f'v_mad_u32_u24 v{r}, v{r}, s42, v14')
        l.append(f'ds_read_b128 a[{e_reg(phi)}:{e_reg(phi) + 3}], v{r} offset:{TAB_LDS + 32 * kap}')
        return l

    npre = min(D, 3)
    for s in range(npre): issue_b(s)
    p.wait_for(dma)
    p.barrier()
    st.stamp()
    for slot in range(4): p.I(idx_read(0, slot))
    for s in range(npre, D): issue_b(s)
    for slot in range(4): p.I(idx_read(1, slot))
    for phi in range(L):
        for t in e_instrs(phi): p.I(t)
    for mm in range(4):
        for t in trans_group(0, mm): p.I(t)
    if D < NS:
        issue_b(D)
    st.stamp()
    for s in range(NS):
        side = [[] for _ in range(16)]
        for k in range(8):
            phi = 8 * s + k + L
            if phi < 8 * NS and not o.no_a:
                side[2 * k + 1] += e_instrs(phi)
        if s + 1 < NS:
            sr, st_ = soff_instr(s + 1 + D) if s + 1 + D < NS else (None, None)
            if st_: side[0].append(st_)
            for mm in range(4):
                g = trans_group(s + 1, mm)
                side[4 * mm] += g[0:2]
                side[4 * mm + 1] += g[2:3]
                side[4 * mm + 2] += g[3:6]
                if st_ and not o.no_b:
                    side[4 * mm + 3] += [bload(s + 1 + D, 2 * mm, sr), bload(s + 1 + D, 2 * mm + 1, sr)]
        c2, slot = None, None
        if s >= 2:
            c, slot = divmod(s - 2, 4)
            c2 = c + 2
        if c2 is not None and c2 <= 6:
            pre = []
            if c2 == 6:
                pre.append(f'v_subrev_u32 v{10 + slot}, s45, v{10 + slot}')
            side[14] += pre + [idx_read(c2, slot)]
        if s == 0:
            side[2].append('s_mul_i32 s45, s33, 12')
        for k in range(16):
            kap, r = divmod(k, 8)
            slot, jj = divmod(r, 2)
            acc = 32 * slot + 16 * jj
            phi = 8 * s + 4 * kap + slot
            cin = '0' if (s == 0 and kap == 0) else f'a[{acc}:{acc + 15}]'
            if not o.no_mfma:
                p.I(f'v_mfma_f32_32x32x16_bf16 a[{acc}:{acc + 15}], v[{bt(s, kap, jj)}:{bt(s, kap, jj) + 3}], a[{e_reg(phi)}:{e_reg(phi) + 3}], {cin}')
            for t in side[k]: p.I(t)
    st.stamp()
    for s in range(1, 4):
        p.I(f's_xor_b32 s36, s33, {s}')
        p.I('s_mul_i32 s36, s36, 3')
        p.I(f's_add_u32 s36, s36, {s - 1}')
        p.I('s_lshl_b32 s36, s36, 13')
        p.I(f'v_add_u32 v{1 + s}, s36, v7')
    p.I('s_mul_i32 s36, s33, 24576')
    p.I('v_add_u32 v5, s36, v7')
    p.wait(lg=0)
    p.barrier()
    for s in range(1, 4):
        for Q in range(8):
            a = 32 * s + 4 * Q
            p.I(f'ds_write_b128 v{1 + s}, a[{a}:{a + 3}] offset:{Q * 1024}')
    for r in range(32):
        p.I(f'v_accvgpr_read_b32 v{16 + r}, a{r}')
    p.I('v_and_b32 v15, 31, v1')
    p.I('v_lshrrev_b32 v6, 2, v15')
    p.I('v_lshlrev_b32 v6, 10, v6')
    p.I('v_lshl_add_u32 v6, v14, 2, v6')
    p.I('v_and_b32 v15, 3, v1')
    p.I('v_lshl_add_u32 v6, v15, 4, v6')
    p.I('s_lshl_b32 s36, s32, 3')
    p.I('s_add_u32 s36, s36, s30')
    p.I('s_lshl_b32 s36, s36, 2')
    p.I('s_add_u32 s36, s36, s31')
    p.I('s_lshl_b32 s36, s36, 2')
    p.I('s_add_u32 s36, s36, s33')
    p.I('s_lshl_b32 s36, s36, 13')
    p.wait(lg=0)
    p.barrier()
    st.stamp()
    def rbuf(Q, rank): return 80 + (Q * 3 + rank) * 4
    order = [(Q, rank) for Q in range(8) for rank in range(3)]
    AH = 12
    def rd(k):
        Q, rank = order[k]
        b = rbuf(Q, rank)
        p.I(f'ds_read_b128 v[{b}:{b + 3}], v5 offset:{rank * 8192 + Q * 1024}')
    for k in range(AH): rd(k)
    for k in range(24):
        Q, rank = order[k]
        b = rbuf(Q, rank)
        for e in range(4):
            p.I(f'v_add_f32 v{16 + 4 * Q + e}, v{16 + 4 * Q + e}, v{b + e}')
        if k + AH < 24: rd(k + AH)
        if rank == 2:
            p.I(f'buffer_store_dwordx4 v[{16 + 4 * Q}:{19 + 4 * Q}], v6, s[24:27], s36 offen offset:{Q * 128}{o.stflags}')
    st.stamp()
    if o.stamps:
        p.wait(vm=0)
        st.stamp()
        p.I('s_lshl_b32 s94, s2, 2')
        p.I('s_add_u32 s94, s94, s33')
        st.dump(10, 15, 14, 94, 0)
    p.label('L_gemm_done')
    p.I('s_endpgm')
    return p, kernel_desc(name, 448, 256)


def gen_final(o):
    p = Prog()
    st = Stamps(p, o.stamps)
    name = 'final_kernel'
    p.raw('.text'); p.raw(f'.globl {name}'); p.raw('.p2align 8'); p.raw(f'.type {name},@function')
    p.label(name)
    p.I('s_cmp_ge_u32 s2, 256')
    p.I('s_cbranch_scc1 L_final_done')
    st.stamp()
    p.I('s_load_dwordx4 s[4:7], s[0:1], 0')
    p.I('s_load_dwordx2 s[8:9], s[0:1], 16')
    p.I('s_load_dwordx2 s[10:11], s[0:1], 72')
    p.I('s_load_dwordx8 s[44:51], s[0:1], 32')
    p.I('v_lshrrev_b32 v15, 6, v0')
    p.I('v_and_b32 v1, 63, v0')
    p.I('v_readfirstlane_b32 s33, v15')
    p.I('v_lshlrev_b32 v7, 4, v1')
    p.I('v_and_b32 v2, 15, v1')
    p.I('v_lshrrev_b32 v3, 4, v1')
    srd(p, 12, 4, 409600)
    srd(p, 16, 6, 256000)
    srd(p, 20, 8, 20000)
    srd(p, 24, 10, X_BYTES)
    srd(p, 28, 44, 1024)
    srd(p, 36, 46, 1024)
    srd(p, 52, 48, 2)
    srd(p, 56, 50, 2048)
    p.I('s_lshl_b32 s34, s2, 2')
    p.I('s_add_u32 s34, s34, s33')
    p.I('s_mul_i32 s34, s34, 400')
    p.I('v_lshlrev_b32 v4, 2, v2')
    IX = 8
    for I in range(7):
        p.I(f'buffer_load_dword v{IX + I}, v4, s[12:15], s34 offen offset:{64 * I}')
    p.I('s_lshr_b32 s35, s2, 5')
    p.I('s_lshl_b32 s35, s35, 20')
    p.I('s_and_b32 s40, s2, 31')
    p.I('s_lshl_b32 s40, s40, 10')
    p.I('s_add_u32 s35, s35, s40')
    p.I('s_lshl_b32 s40, s33, 18')
    p.I('s_add_u32 s35, s35, s40')
    XR = 160
    for nn in range(2):
        for q in range(4):
            b = XR + (nn * 4 + q) * 4
            p.I(f'buffer_load_dwordx4 v[{b}:{b + 3}], v7, s[24:27], s35 offen{o.ldflags}')
            p.I('s_add_u32 s35, s35, 32768')
    p.I('s_mul_i32 s40, s33, 6144')
    p.I('s_mov_b32 m0, s40')
    wdma = []
    for t in range(6):
        if t == 4:
            p.I('s_add_u32 m0, m0, 4096')
            p.I('s_add_u32 s40, s40, 4096')
        wdma.append(p.I(f'buffer_load_dwordx4 v7, s[20:23], s40 offen offset:{(t % 4) * 1024} lds'))
    BR, WR = 192, 200
    for r in range(16): p.I(f'v_mov_b32 v{BR + r}, 0')
    p.I('v_mov_b32 v25, 0')
    p.I('v_bfe_u32 v15, v1, 3, 1')
    p.I('v_lshlrev_b32 v5, 6, v15')
    p.I('v_bfe_u32 v15, v1, 2, 1')
    p.I('v_lshl_add_u32 v5, v15, 5, v5')
    p.I('v_bfe_u32 v15, v1, 4, 1')
    p.I('v_lshl_add_u32 v5, v15, 2, v5')
    p.I('v_lshrrev_b32 v15, 5, v1')
    p.I('v_lshl_add_u32 v5, v15, 1, v5')
    p.I('s_lshl_b32 s41, s33, 8')
    for nn in range(2):
        for e in range(4):
            p.I(f'buffer_load_short_d16_hi v{BR + nn * 4 + e}, v5, s[28:31], s41 offen offset:{nn * 128 + 8 * e}')
            p.I(f'buffer_load_short_d16_hi v{WR + nn * 4 + e}, v5, s[36:39], s41 offen offset:{nn * 128 + 8 * e}')
    p.I('v_mov_b32 v6, 0')
    p.I('buffer_load_short_d16_hi v25, v6, s[52:55], 0 offen')
    ER = 32
    def E(I, ks): return ER + (I * 4 + ks) * 4
    p.I('v_lshlrev_b32 v15, 4, v3')
    p.I('v_cmp_gt_u32 vcc, 4, v2')
    p.I('v_mov_b32 v16, 0x10000000')
    for I in range(7):
        p.I(f'v_lshl_add_u32 v{IX + I}, v{IX + I}, 8, v15')
        if I == 6:
            p.I(f'v_cndmask_b32 v{IX + I}, v16, v{IX + I}, vcc')
        for ks in range(4):
            p.I(f'buffer_load_dwordx4 v[{E(I, ks)}:{E(I, ks) + 3}], v{IX + I}, s[16:19], 0 offen offset:{64 * ks}')
    st.stamp()
    p.I('s_movk_i32 s42, 200')
    p.I('v_mul_u32_u24 v17, s42, v2')
    p.I('v_lshl_add_u32 v17, v3, 3, v17')
    p.I('v_lshrrev_b32 v15, 2, v1')
    p.I('v_mul_u32_u24 v18, s42, v15')
    p.I('v_and_b32 v15, 3, v1')
    p.I('v_lshl_add_u32 v18, v15, 3, v18')
    p.I('s_mov_b32 s43, 0x3d372713')
    p.I('s_mov_b32 s42, 0xc0135761')
    p.I('s_mov_b32 s41, 0xffff0000')
    def rnd(r, tmp):
        p.I(f'v_cvt_pk_bf16_f32 v{tmp}, v{r}, v{r}')
        p.I(f'v_and_b32 v{r}, s41, v{tmp}')
    p.I('v_mov_b32 v19, 0')
    for nn in range(2):
        b = XR + nn * 16
        for e in range(4):
            x = b + e
            p.I(f'v_add_f32 v{x}, v{x}, v{b + 4 + e}')
            p.I(f'v_add_f32 v{b + 8 + e}, v{b + 8 + e}, v{b + 12 + e}')
            p.I(f'v_add_f32 v{x}, v{x}, v{b + 8 + e}')
            t1, t2 = b + 4 + e, b + 8 + e
            rnd(x, t1)
            p.I(f'v_add_f32 v{x}, v{x}, v{BR + nn * 4 + e}')
            rnd(x, t1)
            p.I(f'v_mul_f32 v{t1}, v{x}, v{x}')
            p.I(f'v_fma_f32 v{t1}, v{t1}, s43, 1.0')
            p.I(f'v_mul_f32 v{t1}, v{t1}, v{x}')
            p.I(f'v_mul_f32 v{t1}, s42, v{t1}')
            p.I(f'v_exp_f32 v{t1}, v{t1}')
            p.I(f'v_add_f32 v{t1}, 1.0, v{t1}')
            p.I(f'v_rcp_f32 v{t1}, v{t1}')
            p.I(f'v_mul_f32 v{x}, v{x}, v{t1}')
            rnd(x, t1)
            p.I(f'v_fmac_f32 v19, v{x}, v{WR + nn * 4 + e}')
    p.I('v_add_f32_dpp v19, v19, v19 row_shr:4 row_mask:0xf bank_mask:0xf')
    p.I('v_add_f32_dpp v19, v19, v19 row_shr:8 row_mask:0xf bank_mask:0xf')
    RED = 24576
    p.I('v_and_b32 v15, 3, v1')
    p.I('v_lshlrev_b32 v20, 6, v15')
    p.I('v_lshl_add_u32 v20, v3, 2, v20')
    p.I('s_lshl_b32 s40, s33, 4')
    p.I('v_add_u32 v20, s40, v20')
    p.I('v_cmp_lt_u32 vcc, 11, v2')
    p.I('s_nop 4')
    p.I('s_and_saveexec_b64 s[84:85], vcc')
    p.I(f'ds_write_b32 v20, v19 offset:{RED}')
    p.I('s_mov_b64 exec, s[84:85]')
    st.stamp()
    p.wait_for(wdma)
    p.barrier()
    st.stamp()
    tiles = [(I, J) for J in range(7) for I in range(J + 1)]
    GR = 208
    WA = 224
    PK = 240
    ACC = 21
    for a in range(4): p.I(f'v_mov_b32 v{ACC + a}, 0')
    def wread(k):
        I, J = tiles[k]
        w = WA + (k % 4) * 4
        p.I(f'ds_read_b64 v[{w}:{w + 1}], v17 offset:{J * 3200 + I * 32}')
        if I < J:
            p.I(f'ds_read_b64_tr_b16 v[{w + 2}:{w + 3}], v18 offset:{I * 3200 + J * 32}')
    def gram(k):
        I, J = tiles[k]
        g = GR + (k % 4) * 4
        for ks in range(4):
            cin = '0' if ks == 0 else f'v[{g}:{g + 3}]'
            p.I(f'v_mfma_f32_16x16x32_bf16 v[{g}:{g + 3}], v[{E(I, ks)}:{E(I, ks) + 3}], v[{E(J, ks)}:{E(J, ks) + 3}], {cin}')
    def fold(k):
        I, J = tiles[k]
        g = GR + (k % 4) * 4
        w = WA + (k % 4) * 4
        pk = PK + (k % 2) * 2
        p.I(f'v_cvt_pk_bf16_f32 v{pk}, v{g}, v{g + 1}')
        p.I(f'v_cvt_pk_bf16_f32 v{pk + 1}, v{g + 2}, v{g + 3}')
        p.I(f'v_dot2_f32_bf16 v{ACC}, v{pk}, v{w}, v{ACC}')
        p.I(f'v_dot2_f32_bf16 v{ACC + 1}, v{pk + 1}, v{w + 1}, v{ACC + 1}')
        if I < J:
            p.I(f'v_dot2_f32_bf16 v{ACC + 2}, v{pk}, v{w + 2}, v{ACC + 2}')
            p.I(f'v_dot2_f32_bf16 v{ACC + 3}, v{pk + 1}, v{w + 3}, v{ACC + 3}')
    n = len(tiles)
    wread(0); wread(1)
    for k in range(n + 2):
        if k < n: gram(k)
        if k >= 2: fold(k - 2)
        if k + 2 < n: wread(k + 2)
    p.I(f'v_add_f32 v{ACC}, v{ACC}, v{ACC + 1}')
    p.I(f'v_add_f32 v{ACC + 2}, v{ACC + 2}, v{ACC + 3}')
    p.I(f'v_add_f32 v{ACC}, v{ACC}, v{ACC + 2}')
    for sh in (1, 2, 4, 8):
        p.I(f'v_add_f32_dpp v{ACC}, v{ACC}, v{ACC} row_shr:{sh} row_mask:0xf bank_mask:0xf')
    p.I(f'v_add_f32_dpp v{ACC}, v{ACC}, v{ACC} row_bcast:15 row_mask:0xa bank_mask:0xf')
    p.I(f'v_add_f32_dpp v{ACC}, v{ACC}, v{ACC} row_bcast:31 row_mask:0xc bank_mask:0xf')
    p.I('s_lshl_b32 s40, s33, 2')
    p.I('v_mov_b32 v20, s40')
    p.I('s_mov_b32 exec_lo, 0')
    p.I('s_mov_b32 exec_hi, 0x80000000')
    p.I(f'ds_write_b32 v20, v{ACC} offset:{RED + 256}')
    p.I('s_mov_b64 exec, -1')
    p.wait(lg=0)
    p.barrier()
    st.stamp()
    p.I('s_cmp_lg_u32 s33, 0')
    p.I('s_cbranch_scc1 L_final_tail')
    p.I('v_and_b32 v15, 3, v1')
    p.I('v_lshlrev_b32 v20, 6, v15')
    p.I('v_lshlrev_b32 v15, 2, v15')
    for k in range(4):
        p.I(f'ds_read_b128 v[{32 + 4 * k}:{35 + 4 * k}], v20 offset:{RED + 16 * k}')
    p.I(f'ds_read_b32 v48, v15 offset:{RED + 256}')
    for k in (8, 4, 2, 1):
        for r in range(k):
            p.I(f'v_add_f32 v{32 + r}, v{32 + r}, v{32 + k + r}')
    rnd(32, 33)
    p.I('v_add_f32 v32, v32, v25')
    rnd(32, 33)
    rnd(48, 33)
    p.I('v_add_f32 v32, v32, v48')
    p.I('v_cvt_pk_bf16_f32 v32, v32, v32')
    p.I('v_lshlrev_b32 v15, 1, v1')
    p.I('s_lshl_b32 s40, s2, 3')
    p.I('s_mov_b64 exec, 15')
    p.I('buffer_store_short v32, v15, s[56:59], s40 offen')
    p.I('s_mov_b64 exec, -1')
    p.wait(vm=0, lg=0)
    p.label('L_final_tail')
    p.wait(vm=0, lg=0)
    if o.stamps:
        st.stamp()
        p.I('s_lshl_b32 s94, s2, 2')
        p.I('s_add_u32 s94, s94, s33')
        st.dump(10, 15, 14, 94, 1)
    p.label('L_final_done')
    p.I('s_endpgm')
    return p, kernel_desc(name, 256, 256)


def main():
    ap = argparse.ArgumentParser()
    ap.add_argument('-o', default='../cdna_kernels/standalone__deep_cross_pnn__recsys.s')
    ap.add_argument('--stamps', action='store_true')
    ap.add_argument('--depth', type=int, default=7)
    ap.add_argument('--look', type=int, default=12)
    ap.add_argument('--map', type=int, default=0)
    ap.add_argument('--no_a', action='store_true')
    ap.add_argument('--no_b', action='store_true')
    ap.add_argument('--no_mfma', action='store_true')
    ap.add_argument('--stflags', default='')
    ap.add_argument('--ldflags', default='')
    o = ap.parse_args()
    if o.stflags: o.stflags = ' ' + o.stflags
    if o.ldflags: o.ldflags = ' ' + o.ldflags
    p1, d1 = gen_gemm(o)
    p2, d2 = gen_final(o)
    s = HEADER
    s += f'; @launch kernel=gemm_kernel grid=(256,1,1) block=(256,1,1) lds={LDS1}\n'
    s += f'; @launch kernel=final_kernel grid=(256,1,1) block=(256,1,1) lds={24576 + 512}\n'
    s += '.amdgcn_target "amdgcn-amd-amdhsa--gfx950"\n'
    s += p1.text() + p2.text() + d1 + d2
    open(o.o, 'w').write(s)
    print(f'gemm: {p1.count()} instrs, {p1.nwait} waits, {p1.nnop} nops; final: {p2.count()} instrs, {p2.nwait} waits, {p2.nnop} nops')

main()
```
